```python
import torch

def _softmax(x, axis=-1):
    return torch.softmax(x, dim=axis)
def _gelu(x):
    return torch.nn.functional.gelu(x, approximate="tanh")
def _silu(x):
    return torch.nn.functional.silu(x)
def _sigmoid(x):
    return torch.sigmoid(x)
def _layernorm(x, axis=-1, eps=1e-5):
    m = x.mean(dim=axis, keepdim=True)
    v = x.var(dim=axis, keepdim=True, unbiased=False)
    return (x - m) / torch.sqrt(v + eps)
def _scatter_add(tgt, idx, src, axis=0):
    return tgt.clone().index_add_(axis, idx, src)
def _segment_sum(src, seg, n):
    out = torch.zeros((n,) + src.shape[1:], dtype=src.dtype)
    return out.index_add_(0, seg, src)
def _pad(x, pw):
    flat = tuple(v for pair in reversed(pw) for v in pair)
    return torch.nn.functional.pad(x, flat)

kernel_name = 'standalone__grouped_kv_mqa__prompt'

def setup_inputs():

    _w = (lambda a: (lambda t: t.to(torch.bfloat16) if t.is_floating_point() else t)(torch.as_tensor(a)))
    B, S, D, H = 1, 2048, 640, 32
    Dh = D // H
    return {
        "x": _w((lambda *s: torch.randn(*s, dtype=torch.bfloat16) * 0.05)(B, S, D)),
        "wq": _w((lambda *s: torch.randn(*s, dtype=torch.bfloat16) * 0.8)(D, H * Dh)),
        "wk": _w((lambda *s: torch.randn(*s, dtype=torch.bfloat16) * 0.8)(D, Dh)),
        "wv": _w((lambda *s: torch.randn(*s, dtype=torch.bfloat16) * 0.05)(D, Dh)),
        "wo": _w((lambda *s: torch.randn(*s, dtype=torch.bfloat16) * 0.05)(H * Dh, D)),
    }

def reference(x, wq, wk, wv, wo):
    B, S, D = x.shape
    H = 32
    Dh = D // H
    q = (lambda x, *d: x.permute(*d))((x @ wq).reshape(B, S, H, Dh), 0, 2, 1, 3)
    k = x @ wk
    v = x @ wv
    scores = torch.einsum("bhqd,bkd->bhqk", q, k) * (Dh ** -0.5)
    p = _softmax(scores, axis=-1)
    o = torch.einsum("bhqk,bkd->bhqd", p, v)
    return (lambda x, *d: x.permute(*d))(o, 0, 2, 1, 3).reshape(B, S, H * Dh) @ wo
```

```python
class Asm:
    def __init__(self):
        self.lines = []
    def __call__(self, s):
        for ln in s.strip("\n").split("\n"):
            ln = ln.strip()
            if not ln: continue
            if ln.endswith(":") or ln.startswith("."):
                self.lines.append(ln)
            else:
                self.lines.append("  " + ln)
    def label(self, l): self.lines.append(l + ":")
    def text(self): return "\n".join(self.lines) + "\n"
def vr(b, n=1): return f"v{b}" if n == 1 else f"v[{b}:{b+n-1}]"
def sr(b, n=1): return f"s{b}" if n == 1 else f"s[{b}:{b+n-1}]"
def kernel_desc(name, vgpr, sgpr=96, acc=None):
    acc = acc or ((vgpr + 3) // 4 * 4)
    return f""".section .rodata,"a"
.p2align 6
.amdhsa_kernel {name}
  .amdhsa_next_free_vgpr {vgpr}
  .amdhsa_next_free_sgpr {sgpr}
  .amdhsa_accum_offset {acc}
  .amdhsa_group_segment_fixed_size 0
  .amdhsa_kernarg_size 64
  .amdhsa_user_sgpr_count 2
  .amdhsa_user_sgpr_kernarg_segment_ptr 1
  .amdhsa_system_sgpr_workgroup_id_x 1
.end_amdhsa_kernel
"""
def kernel_head(name):
    return f""".text
.globl {name}
.p2align 8
.type {name},@function
{name}:
"""
```

```python
import math, struct, sys
from asmlib import *

KV_OFF = 0
Q_OFF = 0x40000
O_OFF = 0x400000
WS_BYTES = 0x800000
CSCALE = math.log2(math.e) / math.sqrt(20.0)
def f32bits(x): return struct.unpack("<I", struct.pack("<f", x))[0]

sX, sWQ, sWK, sWV, sWO, sOUT, sDBG, sWS = 4, 6, 8, 10, 12, 14, 16, 18
sR, sG, sW, sQT, sKH = 20, 21, 22, 23, 24
SRD_A, SRD_W, SRD_KV, SRD_WS, SRD_OUT = 28, 32, 36, 40, 44

def srd(a, d, base, nbytes):
    a(f"s_mov_b32 s{d}, s{base}\ns_and_b32 s{d+1}, s{base+1}, 0xffff\ns_mov_b32 s{d+2}, {nbytes}\ns_mov_b32 s{d+3}, 0x20000")

def common_head(a, end):
    a(f"""
    s_cmp_ge_u32 s2, 256
    s_cbranch_scc1 {end}
    s_load_dwordx16 s[4:19], s[0:1], 0
    s_and_b32 s{sR}, s2, 7
    s_lshl_b32 s{sR}, s{sR}, 2
    s_bfe_u32 s{sG}, s2, 0x20003
    s_add_u32 s{sR}, s{sR}, s{sG}
    s_lshr_b32 s{sG}, s2, 5
    v_lshrrev_b32 v1, 6, v0
    v_and_b32 v0, 63, v0
    s_nop 0
    v_readfirstlane_b32 s{sW}, v1
    s_nop 3
    s_and_b32 s{sQT}, s{sW}, 3
    s_lshr_b32 s{sKH}, s{sW}, 2
    """)

def w_dma_addrs(a, vb, tmp, swizzle):
    a(f"s_mul_i32 s25, s{sG}, 160\ns_movk_i32 s26, 1280")
    for m in range(5):
        a(f"v_add_u32 v{tmp}, {64*m}, v0")
        a(f"v_mul_u32_u24 v{tmp+1}, 6554, v{tmp}")
        a(f"v_lshrrev_b32 v{tmp+1}, 16, v{tmp+1}")
        a(f"v_mul_u32_u24 v{tmp+2}, 10, v{tmp+1}")
        a(f"v_sub_u32 v{tmp}, v{tmp}, v{tmp+2}")
        if swizzle:
            a(f"v_lshrrev_b32 v{tmp+2}, 1, v{tmp+1}")
            a(f"v_and_b32 v{tmp+2}, 4, v{tmp+2}")
            a(f"v_xor_b32 v{tmp+1}, v{tmp+1}, v{tmp+2}")
        a(f"v_lshl_add_u32 v{tmp}, v{tmp}, 4, s25")
        a(f"v_mad_u32_u24 v{vb+m}, v{tmp+1}, s26, v{tmp}")
        if 0 < m < 4:
            a(f"v_subrev_u32 v{vb+m}, {1024*m}, v{vb+m}")

def w_dma_group(a, vb, sgrp, st0, st1, ldsbase=0):
    a(f"s_mul_i32 s{st0}, s{sgrp}, 40960")
    a(f"s_mul_i32 s{st1}, s{sgrp}, 5120")
    if ldsbase: a(f"s_add_u32 s{st1}, s{st1}, {ldsbase}")
    a(f"s_mov_b32 m0, s{st1}")
    a(f"s_add_u32 s{st1}, s{st1}, 4096")
    for m in range(4):
        a(f"buffer_load_dwordx4 v{vb+m}, s[{SRD_W}:{SRD_W+3}], s{st0} offen offset:{1024*m} lds")
    a(f"s_mov_b32 m0, s{st1}")
    a("s_nop 0")
    a(f"buffer_load_dwordx4 v{vb+4}, s[{SRD_W}:{SRD_W+3}], s{st0} offen lds")

def mfma16(d, A, B, c=None):
    cs = vr(d, 4) if c is None else c
    return f"v_mfma_f32_16x16x32_bf16 {vr(d,4)}, {vr(A,4)}, {vr(B,4)}, {cs}"

X0, AB0, AB1, ACC = 16, 56, 76, 96
def gemm_round(a, steps, rd):
    bufs = [AB0, AB1]
    for t in range(5):
        for ln in rd(steps[0], t): a(ln.format(b0=vr(bufs[0]+4*t, 2), b1=vr(bufs[0]+4*t+2, 2)))
    for i, s in enumerate(steps):
        cur = bufs[i % 2]; nxt = bufs[(i + 1) % 2]
        a("s_waitcnt lgkmcnt(0)")
        for t in range(5):
            a(mfma16(ACC + 4*t, cur + 4*t, X0 + 4*s))
            if i + 1 < len(steps):
                for ln in rd(steps[i+1], t): a(ln.format(b0=vr(nxt+4*t, 2), b1=vr(nxt+4*t+2, 2)))

def reduce2(a, pfx, ldsoff, vl16, T):
    a(f"s_mul_i32 s25, s{sQT}, 5120\ns_add_u32 s25, s25, {ldsoff}")
    a(f"v_add_u32 v{vl16}, s25, v{vl16}")
    a("s_nop 7")
    a(f"s_cmp_eq_u32 s{sKH}, 0\ns_cbranch_scc0 {pfx}_w1")
    for t in (2, 3): a(f"ds_write_b128 v{vl16}, {vr(ACC+4*t,4)} offset:{1024*t}")
    a(f"s_branch {pfx}_wd")
    a.label(f"{pfx}_w1")
    for t in (0, 1, 4): a(f"ds_write_b128 v{vl16}, {vr(ACC+4*t,4)} offset:{1024*t}")
    a.label(f"{pfx}_wd")
    a("s_waitcnt lgkmcnt(0)\ns_barrier")

def gen_proj():
    a = Asm()
    LW, LWK = 0, 102400
    LKVP = LWK + 26112
    LQP = LKVP + 2048
    lds = LQP + 20480
    common_head(a, "P_end")
    a(f"""
    v_and_b32 v13, 15, v0
    v_lshrrev_b32 v14, 4, v0
    v_lshlrev_b32 v12, 4, v0
    s_lshl_b32 s25, s{sR}, 6
    s_lshl_b32 s26, s{sQT}, 4
    s_add_u32 s25, s25, s26
    v_add_u32 v2, s25, v13
    v_mul_u32_u24 v2, 1280, v2
    v_lshl_add_u32 v2, v14, 4, v2
    s_mul_i32 s26, s{sKH}, 640
    v_add_u32 v2, s26, v2
    """)
    w_dma_addrs(a, 3, 124, True)
    a(f"""
    v_bfe_u32 v124, v0, 2, 2
    v_and_b32 v125, 3, v0
    v_lshl_add_u32 v126, v14, 3, v124
    v_and_b32 v127, 1, v14
    v_lshlrev_b32 v127, 2, v127
    v_add_u32 v128, v126, v127
    v_xor_b32 v129, 4, v128
    v_mul_u32_u24 v130, 40, v125
    s_mul_i32 s26, s{sKH}, 51200
    v_add_u32 v130, s26, v130
    s_movk_i32 s27, 160
    v_mad_u32_u24 v8, v128, s27, v130
    v_mad_u32_u24 v9, v129, s27, v130
    v_mul_u32_u24 v10, 40, v126
    v_lshl_add_u32 v10, v125, 3, v10
    s_mul_i32 s26, s{sKH}, 12800
    v_add_u32 v11, s26, v12
    s_add_u32 s26, s26, {LWK}
    v_add_u32 v10, s26, v10
    s_waitcnt lgkmcnt(0)
    """)
    srd(a, SRD_A, sX, 2621440)
    srd(a, SRD_W, sWQ, 819200)
    a(f"s_bitcmp1_b32 s{sG}, 0\ns_cselect_b32 s48, s{sWV}, s{sWK}\ns_cselect_b32 s49, s{sWV+1}, s{sWK+1}")
    srd(a, SRD_KV, 48, 25600)
    srd(a, SRD_WS, sWS, WS_BYTES)
    for i in range(20): a(f"v_mov_b32 v{ACC+i}, 0")
    a(f"s_lshr_b32 s50, s{sG}, 1\ns_cmp_eq_u32 s{sQT}, s50\ns_cbranch_scc1 P_kvwave")
    def xloads():
        for s in range(10):
            a(f"buffer_load_dwordx4 {vr(X0+4*s,4)}, v2, s[{SRD_A}:{SRD_A+3}], 0 offen offset:{64*s}")
    xloads()
    a(f"s_cmp_gt_u32 s{sQT}, s50\ns_cselect_b32 s51, 1, 0\ns_sub_u32 s51, s{sQT}, s51\ns_mul_i32 s52, s{sKH}, 10\ns_add_u32 s51, s51, s52")
    for rho in range(3):
        w_dma_group(a, 3, 51, 52, 53)
        if rho < 2: a("s_add_u32 s51, s51, 3")
    a("s_waitcnt vmcnt(10)\ns_barrier\ns_branch P_common")
    a.label("P_kvwave")
    for n in range(13):
        if n % 4 == 0:
            a(f"s_add_u32 s52, s26, {1024*n}\ns_mov_b32 m0, s52\ns_movk_i32 s53, {1024*n}")
        a(f"buffer_load_dwordx4 v11, s[{SRD_KV}:{SRD_KV+3}], s53 offen offset:{1024*(n%4)} lds")
    xloads()
    a(f"s_mul_i32 s51, s{sKH}, 10\ns_add_u32 s51, s51, 9")
    w_dma_group(a, 3, 51, 52, 53)
    KA = 116
    for i in range(8): a(f"v_mov_b32 v{KA+i}, 0")
    a("s_waitcnt vmcnt(5)")
    def kvreads(s, b):
        for tl in range(2):
            for e in range(2):
                a(f"ds_read_b64_tr_b16 {vr(b+4*tl+2*e,2)}, v10 offset:{1280*s+160*e+32*tl}")
    a(f"s_bitcmp1_b32 s{sG}, 0\ns_cbranch_scc1 P_vmm")
    for isv in (0, 1):
        if isv: a.label("P_vmm")
        bufs = [AB0, AB0 + 8, AB1]
        kvreads(0, bufs[0]); kvreads(1, bufs[1])
        for s in range(10):
            if s + 2 < 10:
                kvreads(s + 2, bufs[(s + 2) % 3]); a("s_waitcnt lgkmcnt(8)")
            elif s + 1 < 10: a("s_waitcnt lgkmcnt(4)")
            else: a("s_waitcnt lgkmcnt(0)")
            b = bufs[s % 3]
            for tl in range(2):
                if isv: a(mfma16(KA + 4*tl, X0 + 4*s, b + 4*tl))
                else:   a(mfma16(KA + 4*tl, b + 4*tl, X0 + 4*s))
        if not isv: a("s_branch P_kvdone")
    a.label("P_kvdone")
    a(f"v_add_u32 v124, {LKVP}, v12\ns_nop 7")
    a(f"s_cmp_eq_u32 s{sKH}, 0\ns_cbranch_scc1 P_kv0")
    a(f"ds_write_b128 v124, {vr(KA,4)}\nds_write_b128 v124, {vr(KA+4,4)} offset:1024\ns_waitcnt lgkmcnt(0)\ns_barrier\ns_branch P_common")
    a.label("P_kv0")
    a("s_barrier")
    a(f"ds_read_b128 v[128:131], v124\nds_read_b128 v[132:135], v124 offset:1024")
    a(f"""
    s_lshl_b32 s52, s{sR}, 1
    s_lshr_b32 s53, s{sQT}, 1
    s_add_u32 s52, s52, s53
    s_mul_i32 s52, s52, 3072
    s_add_u32 s52, s52, {KV_OFF}
    s_and_b32 s53, s{sQT}, 1
    v_lshrrev_b32 v136, 1, v14
    v_and_b32 v137, 1, v14
    s_waitcnt lgkmcnt(0)
    """)
    for i in range(8): a(f"v_add_f32 v{KA+i}, v{KA+i}, v{128+i}")
    for i in range(4): a(f"v_cvt_pk_bf16_f32 v{128+i}, v{KA+2*i}, v{KA+2*i+1}")
    a(f"s_bitcmp1_b32 s{sG}, 0\ns_cbranch_scc1 P_vst")
    a(f"""
    s_lshl_b32 s53, s53, 4
    v_add_u32 v138, s53, v13
    v_lshl_add_u32 v139, v136, 5, v138
    v_lshlrev_b32 v139, 4, v139
    v_lshl_add_u32 v139, v137, 3, v139
    buffer_store_dwordx2 v[128:129], v139, s[{SRD_WS}:{SRD_WS+3}], s52 offen
    v_lshl_add_u32 v140, v14, 5, v138
    v_lshlrev_b32 v140, 3, v140
    v_mov_b32 v141, 0x3f803f80
    v_mov_b32 v142, 0x3f80
    v_cmp_gt_u32 vcc, 16, v0
    s_nop 1
    v_cndmask_b32 v130, v141, v130, vcc
    v_cndmask_b32 v131, v142, v131, vcc
    s_mov_b32 exec_hi, 0
    buffer_store_dwordx2 v[130:131], v140, s[{SRD_WS}:{SRD_WS+3}], s52 offen offset:1024
    s_mov_b64 exec, -1
    s_branch P_common
    """)
    a.label("P_vst")
    a(f"""
    s_mul_i32 s53, s53, 768
    s_add_u32 s52, s52, s53
    v_mul_u32_u24 v139, 24, v136
    v_add_u32 v139, v139, v13
    v_lshlrev_b32 v139, 4, v139
    v_lshl_add_u32 v139, v137, 3, v139
    buffer_store_dwordx2 v[128:129], v139, s[{SRD_WS}:{SRD_WS+3}], s52 offen offset:1536
    v_mov_b32 v141, 0x3f803f80
    v_cmp_eq_u32 vcc, 4, v13
    s_nop 1
    v_cndmask_b32 v141, 0, v141, vcc
    v_cmp_gt_u32 vcc, 4, v13
    s_nop 1
    v_cndmask_b32 v130, v141, v130, vcc
    v_cndmask_b32 v131, v141, v131, vcc
    v_cmp_gt_u32 vcc, 8, v13
    s_and_saveexec_b64 s[54:55], vcc
    buffer_store_dwordx2 v[130:131], v139, s[{SRD_WS}:{SRD_WS+3}], s52 offen offset:1792
    s_mov_b64 exec, -1
    """)
    a.label("P_common")
    rd = lambda s, t: [f"ds_read_b64_tr_b16 {{b0}}, v8 offset:{5120*s+8*t}", f"ds_read_b64_tr_b16 {{b1}}, v9 offset:{5120*s+8*t}"]
    gemm_round(a, [0, 1, 2], rd)
    a("s_waitcnt vmcnt(5)\ns_barrier")
    gemm_round(a, [3, 4, 5], rd)
    a("s_waitcnt vmcnt(0)\ns_barrier")
    gemm_round(a, [6, 7, 8, 9], rd)
    reduce2(a, "P_red", LQP, 12, 124)
    a(f"""
    s_lshl_b32 s52, s{sR}, 3
    s_add_u32 s52, s52, s{sG}
    s_mul_i32 s52, s52, 10240
    s_add_u32 s52, s52, {Q_OFF}
    s_lshr_b32 s53, s{sQT}, 1
    s_mul_i32 s53, s53, 1280
    s_add_u32 s52, s52, s53
    s_and_b32 s53, s{sQT}, 1
    s_lshl_b32 s53, s53, 4
    v_add_u32 v140, s53, v13
    v_mul_u32_u24 v141, 2560, v14
    v_lshl_add_u32 v142, v140, 4, v141
    v_lshl_add_u32 v143, v140, 3, v141
    s_mov_b32 s54, {f32bits(CSCALE)}
    s_cmp_eq_u32 s{sKH}, 0
    s_cbranch_scc0 P_fin1
    """)
    def fin(tiles):
        for i, t in enumerate(tiles): a(f"ds_read_b128 {vr(124+4*i,4)}, v12 offset:{1024*t}")
        a("s_waitcnt lgkmcnt(0)")
        for i, t in enumerate(tiles):
            for k in range(4): a(f"v_add_f32 v{ACC+4*t+k}, v{ACC+4*t+k}, v{124+4*i+k}")
        for i, t in enumerate(tiles):
            for k in range(4): a(f"v_mul_f32 v{ACC+4*t+k}, s54, v{ACC+4*t+k}")
        for i, t in enumerate(tiles):
            for k in range(2): a(f"v_cvt_pk_bf16_f32 v{124+2*i+k}, v{ACC+4*t+2*k}, v{ACC+4*t+2*k+1}")
    fin([0, 1, 4])
    a(f"buffer_store_dwordx4 v[124:127], v142, s[{SRD_WS}:{SRD_WS+3}], s52 offen")
    a(f"buffer_store_dwordx2 v[128:129], v143, s[{SRD_WS}:{SRD_WS+3}], s52 offen offset:1024")
    a("s_branch P_end")
    a.label("P_fin1")
    fin([2, 3])
    a(f"buffer_store_dwordx4 v[124:127], v142, s[{SRD_WS}:{SRD_WS+3}], s52 offen offset:512")
    a.label("P_end")
    a("s_endpgm")
    return a.text(), lds, 148

QA1, QA2, QB1, QB2 = 16, 20, 22, 26
K1r, K2r, Vr = 28, 32, 34
SB = [44, 60, 76, 92]
OA, OB = 108, 124
def mf16(d, A, B, c=None):
    cs = vr(d, 16) if c is None else c
    return f"v_mfma_f32_32x32x16_bf16 {vr(d,16)}, {vr(A,4)}, {vr(B,4)}, {cs}"
def mf8(d, A, B):
    return f"v_mfma_f32_32x32x8_bf16 {vr(d,16)}, {vr(A,2)}, {vr(B,2)}, {vr(d,16)}"
def smf(d, A, B):
    return f"v_smfmac_f32_32x32x32_bf16 {vr(d,16)}, {vr(A,4)}, {vr(B,8)}, v5"
def maxtree(a, S, dst, first):
    if first:
        a(f"v_max3_f32 v{dst}, v{S}, v{S+1}, v{S+2}")
        rest = list(range(3, 16))
        for i in range(0, 12, 2): a(f"v_max3_f32 v{dst}, v{dst}, v{S+rest[i]}, v{S+rest[i+1]}")
        a(f"v_max_f32 v{dst}, v{dst}, v{S+15}")
    else:
        for i in range(0, 16, 2): a(f"v_max3_f32 v{dst}, v{dst}, v{S+i}, v{S+i+1}")

def gen_attn():
    a = Asm()
    SLOT = 24576
    LX = 4 * SLOT
    LFLAG = LX + 8 * 3072
    lds = LFLAG + 64
    common_head(a, "A_end")
    a(f"""
    v_lshlrev_b32 v6, 4, v0
    s_mul_i32 s25, s{sKH}, 12288
    v_add_u32 v1, s25, v6
    v_lshlrev_b32 v2, 3, v0
    s_add_u32 s26, s25, 1024
    v_add_u32 v2, s26, v2
    v_and_b32 v7, 31, v0
    v_lshrrev_b32 v8, 5, v0
    v_mul_u32_u24 v3, 24, v8
    v_add_u32 v3, v3, v7
    v_lshlrev_b32 v3, 4, v3
    s_add_u32 s26, s25, 1536
    v_add_u32 v3, s26, v3
    s_mul_i32 s48, s{sW}, 3072
    v_add_u32 v4, s48, v6
    v_mov_b32 v5, 0xdddddddd
    v_lshlrev_b32 v9, 3, v7
    s_lshl_b32 s52, s{sR}, 3
    s_add_u32 s52, s52, s{sG}
    s_mul_i32 s52, s52, 10240
    s_add_u32 s52, s52, {Q_OFF}
    s_mul_i32 s53, s{sQT}, 2560
    s_add_u32 s52, s52, s53
    s_mul_i32 s53, s{sKH}, 1280
    s_sub_u32 s54, 1280, s53
    s_add_u32 s53, s52, s53
    s_add_u32 s54, s52, s54
    s_mov_b32 s60, 0
    s_mov_b32 s61, {SLOT}
    s_waitcnt lgkmcnt(0)
    """)
    srd(a, SRD_WS, sWS, WS_BYTES)
    ws = f"s[{SRD_WS}:{SRD_WS+3}]"
    a(f"""
    buffer_load_dwordx4 {vr(QA1,4)}, v6, {ws}, s53 offen
    buffer_load_dwordx2 {vr(QA2,2)}, v9, {ws}, s53 offen offset:1024
    buffer_load_dwordx4 {vr(QB1,4)}, v6, {ws}, s54 offen
    buffer_load_dwordx2 {vr(QB2,2)}, v9, {ws}, s54 offen offset:1024
    """)
    a.label("A_start")
    def dma_chunk(soff, m0):
        a(f"s_mov_b32 m0, s{m0}\ns_nop 0")
        for i in range(3):
            a(f"buffer_load_dwordx4 v4, {ws}, s{soff} offen offset:{1024*i} lds")
    for c in range(3):
        a(f"s_mov_b32 s50, {KV_OFF + c*SLOT}\ns_add_u32 s51, s48, {c*SLOT}")
        dma_chunk(50, 51)
    for i in range(16): a(f"v_mov_b32 v{OA+i}, 0\nv_mov_b32 v{OB+i}, 0\nv_mov_b32 v{SB[3]+i}, 0")
    for i in range(8): a(f"v_mov_b32 v{Vr+i}, 0")
    a("s_waitcnt vmcnt(6)\ns_barrier")
    a("s_cmp_eq_u32 s60, 0\ns_cbranch_scc0 A_setm")
    a(f"""
    v_lshlrev_b32 v10, 3, v0
    ds_read_b128 {vr(K1r,4)}, v6
    ds_read_b64 {vr(K2r,2)}, v10 offset:1024
    s_mov_b32 exec_lo, 0
    v_mov_b32 v{QA2}, 0
    v_mov_b32 v{QA2+1}, 0
    v_mov_b32 v{QB2}, 0
    v_mov_b32 v{QB2+1}, 0
    s_mov_b64 exec, -1
    s_waitcnt lgkmcnt(0)
    """)
    a(mf16(SB[0], K1r, QA1, "0")); a(mf16(SB[1], K1r, QB1, "0"))
    a(mf8(SB[0], K2r, QA2)); a(mf8(SB[1], K2r, QB2))
    a("s_nop 10")
    maxtree(a, SB[0], 12, True)
    a("s_nop 3")
    maxtree(a, SB[1], 13, True)
    a.label("A_setm")
    a(f"ds_read_b128 {vr(K1r,4)}, v1\nds_read_b64 {vr(K2r,2)}, v2")
    for m, Q2 in ((12, QA2), (13, QB2)):
        a(f"""
        v_mov_b32 v10, v{m}
        v_mov_b32 v11, v{m}
        s_nop 1
        v_permlane32_swap_b32 v10, v11
        s_nop 1
        v_max_f32 v10, v10, v11
        v_sub_f32 v10, 0, v10
        v_and_b32 v11, 0xffff0000, v10
        v_sub_f32 v10, v10, v11
        v_and_b32 v14, 0xffff0000, v10
        v_sub_f32 v10, v10, v14
        v_lshrrev_b32 v11, 16, v11
        s_mov_b32 exec_lo, 0
        v_or_b32 v{Q2}, v11, v14
        v_lshrrev_b32 v{Q2+1}, 16, v10
        s_mov_b64 exec, -1
        """)
    a("s_waitcnt lgkmcnt(0)\ns_nop 1")
    a(mf16(SB[0], K1r, QA1, "0")); a(mf8(SB[0], K2r, QA2))
    a(f"s_mov_b32 s49, 0\ns_setprio 2\ns_nop 9")
    a(".p2align 6")
    a.label("A_loop")
    for p in range(8):
        S = SB[p % 4]; Sn = SB[(p + 1) % 4]; Sp = SB[(p - 1) % 4]
        Q1n, Q2n = (QB1, QB2) if p % 2 == 0 else (QA1, QA2)
        Op = OB if p % 2 == 0 else OA
        t = p // 2
        even = p % 2 == 0
        ex = lambda lo, hi: [a(f"v_exp_f32 v{S+i}, v{S+i}") for i in range(lo, hi)]
        if even and t in (1, 2): a(f"s_setprio {2 - t}")
        if not even: a("s_waitcnt lgkmcnt(2)")
        a(mf16(Sn, K1r, Q1n, "0"))
        ex(0, 4)
        a(mf8(Sn, K2r, Q2n))
        if even:
            if t == 3:
                a(f"""
                s_waitcnt vmcnt(0)
                s_barrier
                s_setprio 3
                s_and_b32 s55, s49, 3
                s_cmp_eq_u32 s55, 3
                s_cselect_b32 s56, {-3*SLOT & 0xffffffff}, s61
                v_add_u32 v1, s56, v1
                v_add_u32 v2, s56, v2
                ds_read_b128 {vr(K1r,4)}, v1
                ds_read_b64 {vr(K2r,2)}, v2
                s_cmp_ge_u32 s49, 5
                s_cbranch_scc1 A_nodma
                s_add_u32 s50, s50, {SLOT}
                s_add_u32 s55, s49, 3
                s_and_b32 s55, s55, 3
                s_mul_i32 s55, s55, {SLOT}
                s_add_u32 s51, s55, s48
                """)
                dma_chunk(50, 51)
                a.label("A_nodma")
            else:
                a(f"ds_read_b128 {vr(K1r,4)}, v1 offset:{3072*(t+1)}\nds_read_b64 {vr(K2r,2)}, v2 offset:{3072*(t+1)}")
        ex(4, 8)
        if not even: a("s_waitcnt lgkmcnt(0)")
        a(smf(Op, Vr, Sp))
        ex(8, 12)
        a(smf(Op, Vr + 4, Sp + 8))
        if even:
            a(f"ds_read_b128 {vr(Vr,4)}, v3 offset:{3072*t}\nds_read_b128 {vr(Vr+4,4)}, v3 offset:{3072*t+768}")
            if t == 3: a("v_add_u32 v3, s56, v3")
        ex(12, 16)
    a("s_setprio 2\ns_add_u32 s49, s49, 1\ns_cmp_lt_u32 s49, 8\ns_cbranch_scc1 A_loop")
    a(smf(OB, Vr, SB[3])); a(smf(OB, Vr + 4, SB[3] + 8))
    a(f"""
    s_mul_i32 s55, s{sW}, 3072
    s_add_u32 s55, s55, {LX}
    v_add_u32 v10, s55, v6
    s_xor_b32 s56, s{sW}, 4
    s_mul_i32 s56, s56, 3072
    s_add_u32 s56, s56, {LX}
    v_add_u32 v11, s56, v6
    s_lshl_b32 s57, s{sW}, 2
    s_add_u32 s57, s57, {LFLAG}
    v_mov_b32 v14, s57
    v_mov_b32 v15, 0x4e800000
    s_nop 7
    ds_write_b128 v10, {vr(OB,4)}
    ds_write_b128 v10, {vr(OB+4,4)} offset:1024
    ds_write_b128 v10, {vr(OB+8,4)} offset:2048
    v_cmp_nle_f32 vcc, v{OA+8}, v15
    v_cmp_nle_f32 s[58:59], v{OB+8}, v15
    s_nop 3
    s_or_b32 s57, vcc_hi, s59
    v_mov_b32 v15, s57
    ds_write_b32 v14, v15
    v_mov_b32 v14, {LFLAG}
    s_waitcnt lgkmcnt(0)
    s_barrier
    ds_read_b128 {vr(SB[0],4)}, v11
    ds_read_b128 {vr(SB[0]+4,4)}, v11 offset:1024
    ds_read_b128 {vr(SB[0]+8,4)}, v11 offset:2048
    ds_read_b128 {vr(SB[1],4)}, v14
    ds_read_b128 {vr(SB[1]+4,4)}, v14 offset:16
    s_lshl_b32 s52, s{sR}, 1
    s_add_u32 s52, s52, s{sKH}
    s_mul_i32 s52, s52, 40960
    s_add_u32 s52, s52, {O_OFF}
    s_mul_i32 s53, s{sG}, 5120
    s_add_u32 s52, s52, s53
    s_lshl_b32 s53, s{sQT}, 10
    s_add_u32 s53, s52, s53
    s_lshr_b32 s54, s{sQT}, 1
    s_lshl_b32 s54, s54, 9
    s_and_b32 s55, s{sQT}, 1
    s_lshl_b32 s55, s55, 3
    s_add_u32 s54, s54, s55
    s_add_u32 s54, s54, 4096
    s_add_u32 s54, s52, s54
    s_waitcnt lgkmcnt(0)
    v_or3_b32 v15, v{SB[1]}, v{SB[1]+1}, v{SB[1]+2}
    v_or3_b32 v15, v15, v{SB[1]+3}, v{SB[1]+4}
    v_or3_b32 v15, v15, v{SB[1]+5}, v{SB[1]+6}
    v_or_b32 v15, v15, v{SB[1]+7}
    """)
    for i in range(12): a(f"v_add_f32 v{OA+i}, v{OA+i}, v{SB[0]+i}")
    a(f"""
    v_readfirstlane_b32 s57, v15
    v_mov_b32 v10, v{OA+8}
    v_mov_b32 v11, v{OA+8}
    s_nop 1
    v_permlane32_swap_b32 v10, v11
    s_cmp_lg_u32 s57, 0
    s_cselect_b32 s57, 1, 0
    s_cmp_gt_u32 s57, s60
    s_cbranch_scc1 A_fallback
    v_rcp_f32 v11, v11
    s_nop 0
    """)
    for i in range(12): a(f"v_mul_f32 v{OA+i}, v{OA+i}, v11")
    for i in range(6): a(f"v_cvt_pk_bf16_f32 v{SB[0]+i}, v{OA+2*i}, v{OA+2*i+1}")
    a(f"""
    buffer_store_dwordx4 {vr(SB[0],4)}, v6, {ws}, s53 offen
    s_mov_b32 exec_hi, 0
    buffer_store_dwordx2 {vr(SB[0]+4,2)}, v6, {ws}, s54 offen
    """)
    a.label("A_end")
    a("s_endpgm")
    a.label("A_fallback")
    a(f"""
    s_mov_b32 s60, 1
    s_mov_b32 exec_lo, 0
    v_mov_b32 v{QA2}, 0
    v_mov_b32 v{QA2+1}, 0
    v_mov_b32 v{QB2}, 0
    v_mov_b32 v{QB2+1}, 0
    s_mov_b64 exec, -1
    v_mov_b32 v12, 0xff800000
    v_mov_b32 v13, 0xff800000
    v_lshlrev_b32 v10, 3, v0
    s_mov_b32 s50, {KV_OFF}
    """)
    a.label("A_fb_loop")
    a(f"""
    buffer_load_dwordx4 {vr(K1r,4)}, v6, {ws}, s50 offen
    buffer_load_dwordx2 {vr(K2r,2)}, v10, {ws}, s50 offen offset:1024
    s_waitcnt vmcnt(0)
    """)
    a(mf16(SB[0], K1r, QA1, "0")); a(mf16(SB[1], K1r, QB1, "0"))
    a(mf8(SB[0], K2r, QA2)); a(mf8(SB[1], K2r, QB2))
    a("s_nop 15")
    maxtree(a, SB[0], 12, False)
    maxtree(a, SB[1], 13, False)
    a(f"""
    s_add_u32 s50, s50, 3072
    s_cmp_lt_u32 s50, {KV_OFF + 64*3072}
    s_cbranch_scc1 A_fb_loop
    s_branch A_start
    """)
    return a.text(), lds, 140

def gen_out():
    a = Asm()
    LQP = 102400
    lds = LQP + 20480
    common_head(a, "O_end")
    a(f"""
    v_and_b32 v13, 15, v0
    v_lshrrev_b32 v14, 4, v0
    v_lshlrev_b32 v12, 4, v0
    v_lshrrev_b32 v124, 1, v14
    v_and_b32 v125, 1, v14
    s_and_b32 s25, s{sQT}, 1
    s_lshl_b32 s25, s25, 4
    v_add_u32 v126, s25, v13
    v_lshl_add_u32 v126, v125, 5, v126
    v_lshlrev_b32 v126, 4, v126
    v_lshl_add_u32 v2, v124, 10, v126
    v_mul_u32_u24 v10, 5120, v124
    v_add_u32 v10, v10, v126
    v_add_u32 v10, 4096, v10
    s_lshl_b32 s52, s{sR}, 1
    s_lshr_b32 s53, s{sQT}, 1
    s_add_u32 s52, s52, s53
    s_mul_i32 s52, s52, 40960
    s_add_u32 s52, s52, {O_OFF}
    s_mul_i32 s53, s{sKH}, 20480
    s_add_u32 s56, s52, s53
    s_add_u32 s57, s56, 5120
    s_add_u32 s58, s56, 10240
    s_add_u32 s59, s56, 15360
    v_bfe_u32 v127, v0, 2, 2
    v_and_b32 v128, 3, v0
    v_mul_u32_u24 v129, 40, v128
    s_mul_i32 s26, s{sKH}, 51200
    v_add_u32 v129, s26, v129
    v_mul_u32_u24 v130, 20, v124
    v_lshl_add_u32 v130, v125, 2, v130
    v_add_u32 v130, v130, v127
    s_movk_i32 s27, 160
    v_mad_u32_u24 v8, v130, s27, v129
    v_mul_u32_u24 v130, 40, v14
    v_add3_u32 v130, v130, v127, 16
    v_mad_u32_u24 v9, v130, s27, v129
    """)
    w_dma_addrs(a, 3, 124, False)
    a("s_waitcnt lgkmcnt(0)")
    srd(a, SRD_W, sWO, 819200)
    srd(a, SRD_WS, sWS, WS_BYTES)
    srd(a, SRD_OUT, sOUT, 2621440)
    ws = f"s[{SRD_WS}:{SRD_WS+3}]"
    a(f"s_mov_b32 s51, s{sW}")
    w_dma_group(a, 3, 51, 52, 53)
    for pl in range(8):
        a(f"buffer_load_dwordx4 {vr(X0+4*pl,4)}, v2, {ws}, s{56+pl//2} offen offset:{2048*(pl%2)}")
    for bl in range(2):
        a(f"buffer_load_dwordx4 {vr(X0+32+4*bl,4)}, v10, {ws}, s{56+2*bl} offen")
    a("s_add_u32 s51, s51, 8")
    w_dma_group(a, 3, 51, 52, 53)
    a(f"s_cmp_ge_u32 s{sW}, 4\ns_cbranch_scc1 O_nodma\ns_add_u32 s51, s51, 8")
    w_dma_group(a, 3, 51, 52, 53)
    a.label("O_nodma")
    for i in range(20): a(f"v_mov_b32 v{ACC+i}, 0")
    a("s_waitcnt vmcnt(0)\ns_barrier")
    def rd(s, t):
        if s < 8: return [f"ds_read_b64_tr_b16 {{b0}}, v8 offset:{6400*s+8*t}", f"ds_read_b64_tr_b16 {{b1}}, v8 offset:{6400*s+1280+8*t}"]
        b = s - 8
        return [f"ds_read_b64_tr_b16 {{b0}}, v9 offset:{25600*b+8*t}", f"ds_read_b64_tr_b16 {{b1}}, v9 offset:{25600*b+3200+8*t}"]
    gemm_round(a, list(range(10)), rd)
    reduce2(a, "O_red", LQP, 12, 124)
    a(f"""
    s_lshl_b32 s25, s{sR}, 6
    s_lshl_b32 s26, s{sQT}, 4
    s_add_u32 s25, s25, s26
    v_add_u32 v140, s25, v13
    v_mul_u32_u24 v140, 1280, v140
    v_mul_u32_u24 v141, 40, v14
    v_add_u32 v140, v140, v141
    s_mul_i32 s52, s{sG}, 160
    s_cmp_eq_u32 s{sKH}, 0
    s_cbranch_scc0 O_fin1
    """)
    def fin(tiles):
        for i, t in enumerate(tiles): a(f"ds_read_b128 {vr(124+4*i,4)}, v12 offset:{1024*t}")
        a("s_waitcnt lgkmcnt(0)")
        for i, t in enumerate(tiles):
            for k in range(4): a(f"v_add_f32 v{ACC+4*t+k}, v{ACC+4*t+k}, v{124+4*i+k}")
        for i, t in enumerate(tiles):
            for k in range(2): a(f"v_cvt_pk_bf16_f32 v{124+2*i+k}, v{ACC+4*t+2*k}, v{ACC+4*t+2*k+1}")
    o = f"s[{SRD_OUT}:{SRD_OUT+3}]"
    fin([0, 1, 4])
    a(f"buffer_store_dwordx4 v[124:127], v140, {o}, s52 offen")
    a(f"buffer_store_dwordx2 v[128:129], v140, {o}, s52 offen offset:32")
    a("s_branch O_end")
    a.label("O_fin1")
    fin([2, 3])
    a(f"buffer_store_dwordx4 v[124:127], v140, {o}, s52 offen offset:16")
    a.label("O_end")
    a("s_endpgm")
    return a.text(), lds, 148

def main(path):
    ks = [("mqa_proj_kernel", gen_proj()), ("mqa_attn_kernel", gen_attn()), ("mqa_out_kernel", gen_out())]
    out = "; MQA prompt attention: proj -> attention -> out-proj (generated by gen3.py)\n"
    for name, (txt, lds, vg) in ks:
        out += f"; @launch kernel={name} grid=(256,1,1) block=(512,1,1) lds={lds}\n"
    out += '.amdgcn_target "amdgcn-amd-amdhsa--gfx950"\n'
    for name, (txt, lds, vg) in ks:
        out += kernel_head(name) + txt
    for name, (txt, lds, vg) in ks:
        out += kernel_desc(name, vg)
    open(path, "w").write(out)
if __name__ == "__main__":
    main(sys.argv[1] if len(sys.argv) > 1 else "standalone__grouped_kv_mqa__prompt.s")
```
